```python
import torch

def _softmax(x, axis=-1):
    return torch.softmax(x, dim=axis)
def _gelu(x):
    return torch.nn.functional.gelu(x, approximate="tanh")
def _silu(x):
    return torch.nn.functional.silu(x)
def _sigmoid(x):
    return torch.sigmoid(x)
def _layernorm(x, axis=-1, eps=1e-5):
    m = x.mean(dim=axis, keepdim=True)
    v = x.var(dim=axis, keepdim=True, unbiased=False)
    return (x - m) / torch.sqrt(v + eps)
def _scatter_add(tgt, idx, src, axis=0):
    return tgt.clone().index_add_(axis, idx, src)
def _segment_sum(src, seg, n):
    out = torch.zeros((n,) + src.shape[1:], dtype=src.dtype)
    return out.index_add_(0, seg, src)
def _pad(x, pw):
    flat = tuple(v for pair in reversed(pw) for v in pair)
    return torch.nn.functional.pad(x, flat)

kernel_name = 'standalone__gqa_softmax__near_ridge'

def setup_inputs():

    _w = (lambda a: (lambda t: t.to(torch.bfloat16) if t.is_floating_point() else t)(torch.as_tensor(a)))
    B, Hq, Hkv, Sq, Sk, D = 8, 16, 8, 128, 2048, 256
    return {
        "q": _w((lambda *s: torch.randn(*s, dtype=torch.bfloat16) * 0.8)(B, Hq, Sq, D)),
        "k": _w((lambda *s: torch.randn(*s, dtype=torch.bfloat16) * 0.8)(B, Hkv, Sk, D)),
        "v": _w((lambda *s: torch.randn(*s, dtype=torch.bfloat16) * 0.05)(B, Hkv, Sk, D)),
    }

def reference(q, k, v):
    B, Hq, Sq, D = q.shape
    Hkv = k.shape[1]
    rep = Hq // Hkv
    k = (lambda x, n, axis: torch.repeat_interleave(x, n, dim=axis))(k, rep, axis=1)
    v = (lambda x, n, axis: torch.repeat_interleave(x, n, dim=axis))(v, rep, axis=1)
    scale = D ** -0.5
    scores = torch.einsum("bhqd,bhkd->bhqk", q, k) * scale
    p = _softmax(scores, axis=-1)
    return torch.einsum("bhqk,bhkd->bhqd", p, v)
```

```python
import sys, math, struct
from hazcheck import check_file

KN = "standalone__gqa_softmax__near_ridge_kernel"
HEADER = """; Kernarg layout for this problem (48 bytes, ptrs only, base s[0:1]):
"""
def f2u(x): return struct.unpack("<I", struct.pack("<f", x))[0]

class Asm:
    def __init__(self): self.l = []
    def __call__(self, s): self.l.append("    " + s)
    def label(self, s): self.l.append(s + ":")
    def text(self): return "\n".join(self.l) + "\n"

V_VOFFK = 2
V_VOFFV = 10
V_KC = 12
V_KA = 20
V_VC = 28
V_VA = 32
V_M = 36; V_L0 = 37; V_L1 = 38
V_T = 39
V_S = [48, 80]
V_PB = [112, 192, 208, 224]
V_OS = 128
V_ST = 240
NV = 244
A_OK = 0
A_Q = 64
A_F = 128
NA = 192
S_SRDQ = 4; S_SRDK = 8; S_SRDV = 12; S_SRDO = 16
S_WAVE = 20; S_C = 21; S_THR = 22
S_KOFF = 23; S_VOFF = 24
S_RD = 25
S_DST = 26
S_CNT = 29; S_T0 = 30; S_T1 = 31; S_W8K = 34; S_SPLIT = 35
S_RET = 36
S_SRDW = 88
S_MYBOX = 92; S_PBOX = 93; S_MYFLAG = 94; S_PFLAG = 95
SLOT = 32768
RING = 5 * SLOT
BOX = 16384
FLAGBASE = 0x4000000

def vr(b, n): return f"v[{b}:{b+n-1}]"
def ar(b, n): return f"a[{b}:{b+n-1}]"
def oacc(dt): return ar(A_OK + 16 * dt, 16) if dt < 4 else vr(V_OS + 16 * (dt - 4), 16)

def adv(s, lim):
    return [f"s_add_u32 s{s}, s{s}, {SLOT}", f"s_cmp_ge_u32 s{s}, {lim}", f"s_cselect_b32 s{s}, {'0' if s == S_RD else 's%d' % S_W8K}, s{s}"]

def dma_unit(kind, pol):
    out = []
    srd = f"s[{S_SRDK}:{S_SRDK+3}]" if kind == "K" else f"s[{S_SRDV}:{S_SRDV+3}]"
    off = S_KOFF if kind == "K" else S_VOFF
    for i in range(8):
        g = []
        if i == 0:
            g.append(f"s_mov_b32 m0, s{S_DST}")
            g.append(f"s_add_u32 s{S_T0}, s{off}, 4096")
        if i == 4:
            g.append(f"s_add_u32 m0, s{S_DST}, 4096")
            g.append(f"s_add_u32 s{off}, s{off}, {SLOT}")
        vo = V_VOFFK + i if kind == "K" else V_VOFFV + (i & 1)
        so = off if i < 4 else S_T0
        g.append(f"buffer_load_dwordx4 v{vo}, {srd}, s{so} offen offset:{(i&3)*1024}{pol} lds")
        if i == 5: g += adv(S_DST, RING)
        out.append(g)
    return out

def op_qk(j, sb):
    s, kb = j // 2, j & 1
    S = V_S[sb]
    c = "0" if s == 0 else vr(S + 16 * kb, 16)
    return dict(reads=[("ds_read_b128", 4, 0, f"v{V_KA + (s & 7)} offset:{(s >> 3) * 256 + kb * 16384}")],
                mfma=f"v_mfma_f32_32x32x16_bf16 {vr(S+16*kb,16)}, {{f}}, {ar(A_Q+4*s,4)}, {c}", kind="K")

def op_pv(ks, dt, pb, areg=None, extra=0):
    if areg is None: areg = V_VA + (dt & 3)
    base = ks * 16 * 512 + (dt >> 2) * 256 + extra
    return dict(reads=[("ds_read_b64_tr_b16", 2, 0, f"v{areg} offset:{base}"),
                       ("ds_read_b64_tr_b16", 2, 2, f"v{areg} offset:{base + 8*512}")],
                mfma=f"v_mfma_f32_32x32x16_bf16 {oacc(dt)}, {{f}}, {vr(V_PB[pb]+4*ks,4)}, {oacc(dt)}", kind="V")

def softmax_stream(sb, pb, per_ks=0):
    S = V_S[sb]; P = V_PB[pb]
    out = []
    for i in range(16 + 2):
        if i < 16:
            for e in (0, 1): out.append((f"v_fma_f32 v{S+2*i+e}, v{S+2*i+e}, s{S_C}, -v{V_M}", 1, 0))
        j = i - 1
        if 0 <= j < 16:
            for e in (0, 1): out.append((f"v_exp_f32 v{S+2*j+e}, v{S+2*j+e}", 2, 0))
        j = i - 2
        if 0 <= j < 16:
            out.append((f"v_add_f32 v{V_L0}, v{V_L0}, v{S+2*j}", 1, 0))
            out.append((f"v_add_f32 v{V_L1}, v{V_L1}, v{S+2*j+1}", 1, 0))
            out.append((f"v_cvt_pk_bf16_f32 v{P+j}, v{S+2*j}, v{S+2*j+1}", 1, per_ks * (j // 4 + 1) - 1 if per_ks else 0))
    return out

def max_stream(sb, cmp=True):
    S = V_S[sb]
    t0, t1 = V_T, V_T + 1
    out = [f"v_max3_f32 v{t0}, v{S}, v{S+1}, v{S+2}", f"v_max3_f32 v{t1}, v{S+3}, v{S+4}, v{S+5}"]
    r = 6; k = 0
    while r < 32:
        t = t0 if k % 2 == 0 else t1
        out.append(f"v_max3_f32 v{t}, v{S+r}, v{S+r+1}, v{t}")
        r += 2; k += 1
    out.append(f"v_max_f32 v{t0}, v{t0}, v{t1}")
    if cmp:
        out.append(f"v_fma_f32 v{t1}, v{t0}, s{S_C}, -v{V_M}")
        out.append(f"v_cmp_lt_f32 vcc, s{S_THR}, v{t1}")
    return out

def cost_of(it):
    if isinstance(it, (list, tuple)): return sum(cost_of(x) for x in it)
    if it.startswith("@"): return 0
    if it.startswith("v_exp"): return 2
    if it.startswith("buffer_"): return 2
    return 1

class Gen:
    def __init__(self, T=16, pol="nt", polq="", polo="", thr=16.0, stamp=False, PD=6, wgrp=2, dma_step=3,
                 x_nodma=False, x_nosm=False, x_nobar=False, x_nomax=False, spin=200000, stampwg=2, g_flag=62, g_poll=72, send_rate=5, maxg=4):
        self.T = T
        self.pol = (" " + pol) if pol else ""
        self.polq = (" " + polq) if polq else ""
        self.polo = (" " + polo) if polo else ""
        self.thr = thr; self.a = Asm(); self.nrare = 0; self.stamp = stamp
        self.PD = PD; self.wgrp = wgrp; self.dma_step = dma_step
        self.x_nodma = x_nodma; self.x_nosm = x_nosm; self.x_nobar = x_nobar; self.x_nomax = x_nomax
        self.spin = spin; self.stampwg = stampwg
        self.g_flag = g_flag; self.g_poll = g_poll; self.send_rate = send_rate; self.maxg = maxg
        self.stubs = []
        self.q = []
        self.opn = 0

    def st(self, k):
        if not self.stamp: return []
        r = ["s_memtime s[60:61]", "s_memrealtime s[62:63]", "s_waitcnt lgkmcnt(0)",
             f"v_writelane_b32 v{V_ST}, s60, {k}", f"v_writelane_b32 v{V_ST+1}, s62, {k}"]
        if k == 0: r += ["s_mov_b32 s64, s60", "s_mov_b32 s65, s62"]
        return r

    def rare_call(self):
        n = self.nrare; self.nrare += 1
        self.stubs.append(n)
        return [f"s_cbranch_vccnz L_rare_{n}", f"@L_back_{n}"]

    def emit(self, x):
        if isinstance(x, (list, tuple)):
            for y in x: self.emit(y)
        elif x.startswith("@"): self.a.label(x[1:])
        else: self.a(x)

    def newM(self, dst):
        t0, t1 = V_T, V_T + 1
        return [f"v_mov_b32 v{t1}, v{t0}", "s_nop 1", f"v_permlane32_swap_b32 v{t0}, v{t1}", "s_nop 1",
                f"v_max_f32 v{t0}, v{t0}, v{t1}", f"v_mul_f32 v{t0}, s{S_C}, v{t0}", f"v_ceil_f32 v{dst}, v{t0}"]

    def rescale_sub(self):
        a = self.a
        t0, t1, t2 = V_T, V_T + 1, V_T + 2
        for n in self.stubs:
            a.label(f"L_rare_{n}")
            a(f"s_getpc_b64 s[{S_RET}:{S_RET+1}]")
            a.label(f"L_rpc_{n}")
            a(f"s_sub_u32 s{S_RET}, s{S_RET}, L_rpc_{n}-L_back_{n}")
            a(f"s_subb_u32 s{S_RET+1}, s{S_RET+1}, 0")
            a("s_branch L_rescale")
        a.label("L_rescale")
        a("s_nop 15")
        self.emit(self.newM(t0))
        a(f"v_max_f32 v{t0}, v{t0}, v{V_M}")
        a(f"v_sub_f32 v{t1}, v{V_M}, v{t0}")
        a(f"v_exp_f32 v{t1}, v{t1}")
        a(f"v_mov_b32 v{V_M}, v{t0}")
        a("s_nop 0")
        a(f"v_mul_f32 v{V_L0}, v{V_L0}, v{t1}")
        a(f"v_mul_f32 v{V_L1}, v{V_L1}, v{t1}")
        for P in V_PB:
            for r in range(16):
                a(f"v_lshlrev_b32 v{t2}, 16, v{P+r}")
                a(f"v_and_b32 v{t2+1}, 0xffff0000, v{P+r}")
                a(f"v_mul_f32 v{t2}, v{t2}, v{t1}")
                a(f"v_mul_f32 v{t2+1}, v{t2+1}, v{t1}")
                a(f"v_cvt_pk_bf16_f32 v{P+r}, v{t2}, v{t2+1}")
        for r in range(64): a(f"v_mul_f32 v{V_OS+r}, v{V_OS+r}, v{t1}")
        for r in range(0, 64, 4):
            for k in range(4): a(f"v_accvgpr_read_b32 v{t2+k}, a{A_OK+r+k}")
            for k in range(4): a(f"v_mul_f32 v{t2+k}, v{t2+k}, v{t1}")
            for k in range(4): a(f"v_accvgpr_write_b32 a{A_OK+r+k}, v{t2+k}")
        a("s_nop 1")
        a(f"s_setpc_b64 s[{S_RET}:{S_RET+1}]")

    def read(self, op, gid):
        for (mn, w, o, addr) in op["reads"]:
            self.a(f"{mn} {ar(A_F + 4 * (gid % 16) + o, w)}, {addr}"); self.q.append(gid)

    def seg(self, phases, nxt, fixed, streams):
        a = self.a; PD = self.PD
        ops = [o for p in phases for o in p["ops"]]
        n = len(ops)
        allops = ops + (nxt["ops"][:PD] if nxt else [])
        starts = {}
        k = 0
        for p in phases[1:] + ([nxt] if nxt else []):
            k += len(phases[len(starts)]["ops"]); starts[k] = p
        sched = {g: list(fixed.get(g, [])) for g in range(n)}
        pre = {g: [] for g in range(n)}
        for k, p in starts.items(): pre[k - PD] += p["sync"]
        def load(g):
            f = g + PD
            return (len(allops[f]["reads"]) if f < len(allops) else 0) + cost_of(sched[g]) + cost_of(pre[g]) + (1 if (g + 1) % self.wgrp == 0 else 0)
        for items, first, last in streams:
            if not items: continue
            gaps = list(range(first, last + 1))
            per = (sum(c for _, c, _ in items) + sum(load(g) for g in gaps)) / len(gaps)
            acc = 0.0; k = 0
            for g in gaps:
                acc += per - load(g)
                while k < len(items) and (acc >= items[k][1] - 0.5 or g == gaps[-1]) and items[k][2] <= g:
                    sched[g].append(items[k][0]); acc -= items[k][1]; k += 1
            assert k == len(items), (k, len(items))
        base = self.opn
        for i in range(n):
            if i % self.wgrp == 0:
                need = base + min(i + self.wgrp - 1, n - 1)
                if need in self.q:
                    last = max(k for k, f in enumerate(self.q) if f == need)
                    cnt = len(self.q) - 1 - last
                    assert cnt <= 15
                    a(f"s_waitcnt lgkmcnt({cnt})")
                    self.q = self.q[last + 1:]
            a(ops[i]["mfma"].format(f=ar(A_F + 4 * ((base + i) % 16), 4)))
            if pre[i]:
                self.emit(pre[i])
                if any("lgkmcnt(0)" in x for x in pre[i]): self.q = []
            if i + PD < len(allops): self.read(allops[i + PD], base + i + PD)
            self.emit(sched[i])
        self.opn = base + n

    def sync(self, vm):
        return [f"s_waitcnt vmcnt({vm}) lgkmcnt(0)"] + ([] if self.x_nobar else ["s_barrier"])

    def ph_pv(self, pb, send_only, vm):
        ops = [op_pv(ks, dt, pb) for ks in range(4) for dt in range(4, 8)]
        if not send_only: ops += [op_pv(ks, dt, pb) for ks in range(4) for dt in range(4)]
        return dict(ops=ops, sync=self.sync(vm))
    def ph_qk(self, sb, vm):
        return dict(ops=[op_qk(j, sb) for j in range(32)], sync=self.sync(vm))

    def addr_next(self, kind):
        r = adv(S_RD, RING)
        if kind == "K": return [r] + [f"v_add_u32 v{V_KA+e}, s{S_RD}, v{V_KC+e}" for e in range(8)]
        return [r] + [f"v_add_u32 v{V_VA+e}, s{S_RD}, v{V_VC+e}" for e in range(4)]

    def body(self, par, pv, qk, nxt, pb_out, dma1, dma2, nxt_kind):
        PD = self.PD
        if self.x_nodma: dma1 = dma2 = None
        phases = [pv] + ([qk] if qk else [])
        npv = len(pv["ops"]); n = npv + (32 if qk else 0)
        fixed = {}
        def add(g, it): fixed.setdefault(min(g, n - 1), []).append(it)
        g0 = self.maxg
        if not self.x_nomax:
            ms = max_stream((par + 1) & 1)
            for k, x in enumerate(ms): add(g0 + k // 3, x)
            add(g0 + 6, self.rare_call())
        step1 = self.dma_step if npv == 32 else 1
        if dma1:
            for k, g in enumerate(dma_unit(dma1, self.pol)): add(k * step1, g)
        if dma2 == "skip":
            add(npv, adv(S_DST, RING))
        elif dma2:
            for k, g in enumerate(dma_unit(dma2, self.pol)): add(npv + k * self.dma_step, g)
        if qk:
            an = self.addr_next("K")
            for k, x in enumerate(an): add((k * (npv - PD - 1)) // len(an), x)
            an = self.addr_next(nxt_kind) if nxt_kind else []
            for k, x in enumerate(an): add(npv + (k * (32 - PD - 1)) // len(an), x)
        elif nxt_kind:
            an = [adv(S_RD, RING)] + self.addr_next(nxt_kind)
            add(npv - PD - 1, an)
        assert pv["pb"] != pb_out
        sm = softmax_stream((par + 1) & 1, pb_out, per_ks=0) if not self.x_nosm else []
        self.seg(phases, nxt, fixed, [(sm, g0 + 7, n - 1)])

    def prologue(self):
        a = self.a
        a("s_cmp_ge_u32 s2, 256")
        a("s_cbranch_scc1 L_done")
        self.emit(self.st(0))
        a("s_load_dwordx4 s[40:43], s[0:1], 0")
        a("s_load_dwordx4 s[44:47], s[0:1], 16")
        a(f"s_load_dwordx2 s[{S_SRDW}:{S_SRDW+1}], s[0:1], 40")
        a("v_lshrrev_b32 v1, 6, v0")
        a("v_and_b32 v0, 63, v0")
        a(f"v_readfirstlane_b32 s{S_WAVE}, v1")
        a("s_and_b32 s48, s2, 7")
        a("s_lshr_b32 s49, s2, 3")
        a("s_lshr_b32 s50, s49, 2"); a("s_lshl_b32 s48, s48, 3"); a("s_add_u32 s50, s50, s48")
        a("s_and_b32 s51, s49, 1")
        a(f"s_bfe_u32 s{S_SPLIT}, s49, 0x10001")
        a("v_lshrrev_b32 v40, 5, v0")
        a("v_and_b32 v41, 31, v0")
        for i in range(8):
            a(f"v_add_u32 v42, {2*i}, v40")
            a(f"v_xor_b32 v42, v42, v41")
            a(f"v_lshlrev_b32 v42, 4, v42")
            a(f"v_lshl_add_u32 v{V_VOFFK+i}, v40, 9, v42")
        keys = 64 * self.T
        a("s_lshl_b32 s53, s50, 1"); a("s_add_u32 s53, s53, s51")
        a(f"s_lshl_b32 s52, s53, 1"); a(f"s_add_u32 s52, s52, s{S_SPLIT}")
        a("s_lshl_b32 s53, s53, 16")
        a("s_lshl_b32 s54, s50, 20")
        a(f"s_mul_i32 s55, s{S_SPLIT}, {keys*512}"); a("s_add_u32 s54, s54, s55")
        a(f"s_lshl_b32 s{S_W8K}, s{S_WAVE}, 13")
        a(f"s_lshl_b32 s56, s{S_WAVE}, 14")
        a(f"s_add_u32 s57, s56, {3*SLOT}")
        a(f"s_mov_b32 s{S_SRDQ+2}, 65536"); a(f"s_mov_b32 s{S_SRDQ+3}, 0x20000")
        a(f"s_mov_b32 s{S_SRDK+2}, {keys*512}"); a(f"s_mov_b32 s{S_SRDK+3}, 0x20000")
        a(f"s_mov_b32 s{S_KOFF}, s{S_W8K}"); a(f"s_mov_b32 s{S_VOFF}, s{S_W8K}")
        a(f"s_mov_b32 s{S_DST}, s{S_W8K}")
        a(f"s_add_u32 m0, s57, 0")
        a("s_waitcnt lgkmcnt(0)")
        a(f"s_add_u32 s{S_SRDQ}, s40, s53"); a(f"s_addc_u32 s{S_SRDQ+1}, s41, 0")
        a(f"s_add_u32 s{S_SRDK}, s42, s54"); a(f"s_addc_u32 s{S_SRDK+1}, s43, 0")
        dmas = []
        for g4 in range(4):
            for i in range(4):
                g = []
                if i == 0 and g4 > 0: g += [f"s_add_u32 m0, s57, {g4*4096}", f"s_add_u32 s56, s56, 4096"]
                g.append(f"buffer_load_dwordx4 v{V_VOFFK + (g4*4+i) % 8}, s[{S_SRDQ}:{S_SRDQ+3}], s56 offen offset:{i*1024}{self.polq} lds")
                dmas.append(g)
        dmas += dma_unit("K", self.pol) + dma_unit("K", self.pol)
        w = []
        w += [f"s_mov_b32 s{S_SRDV+2}, {keys*512}", f"s_mov_b32 s{S_SRDV+3}, 0x20000",
              f"s_mov_b32 s{S_SRDO+2}, 65536", f"s_mov_b32 s{S_SRDO+3}, 0x20000",
              f"s_mov_b32 s{S_SRDW+2}, 0x10000000", f"s_mov_b32 s{S_SRDW+3}, 0x20000",
              [f"s_add_u32 s{S_SRDV}, s44, s54", f"s_addc_u32 s{S_SRDV+1}, s45, 0"],
              [f"s_add_u32 s{S_SRDO}, s46, s53", f"s_addc_u32 s{S_SRDO+1}, s47, 0"],
              f"s_lshl_b32 s52, s52, 2", f"s_add_u32 s52, s52, s{S_WAVE}", f"s_xor_b32 s58, s52, 4",
              f"s_mul_i32 s{S_MYBOX}, s52, {BOX}", f"s_mul_i32 s{S_PBOX}, s58, {BOX}",
              f"s_lshl_b32 s{S_MYFLAG}, s52, 8", f"s_add_u32 s{S_MYFLAG}, s{S_MYFLAG}, {hex(FLAGBASE)}",
              f"s_lshl_b32 s{S_PFLAG}, s58, 8", f"s_add_u32 s{S_PFLAG}, s{S_PFLAG}, {hex(FLAGBASE)}",
              f"s_lshl_b32 s59, s{S_SPLIT}, 8"]
        for i in range(2):
            w += [f"v_add_u32 v42, {2*i}, v40", f"v_lshlrev_b32 v42, 2, v42", f"v_xor_b32 v42, v42, v41",
                  f"v_lshlrev_b32 v42, 4, v42", f"v_xor_b32 v42, s59, v42", f"v_lshl_add_u32 v{V_VOFFV+i}, v40, 9, v42"]
        w += ["v_and_b32 v42, 15, v41", "v_xor_b32 v42, v42, v40", "v_lshlrev_b32 v42, 4, v42"]
        for e in range(8):
            w += [f"v_xor_b32 v43, {e<<5}, v42", f"v_lshl_add_u32 v{V_KC+e}, v41, 9, v43"]
        w += ["v_bfe_u32 v42, v0, 2, 2", "v_lshl_add_u32 v43, v40, 2, v42", "v_lshlrev_b32 v43, 9, v43",
              "v_bfe_u32 v44, v0, 4, 1", "v_lshl_add_u32 v43, v44, 5, v43", "v_and_b32 v44, 3, v0", "v_lshl_add_u32 v43, v44, 3, v43"]
        for e in range(4):
            w += [f"v_xor_b32 v44, {e}, v42", f"v_lshl_add_u32 v{V_VC+e}, v44, 6, v43"]
        w += [f"s_mov_b32 s{S_C}, {hex(f2u(0.0625 * math.log2(math.e)))}", f"s_mov_b32 s{S_THR}, {hex(f2u(self.thr))}",
              f"v_mov_b32 v{V_L0}, 0", f"v_mov_b32 v{V_L1}, 0", f"s_mov_b32 s{S_RD}, {2*SLOT}"]
        w += [f"v_add_u32 v{V_KA+e}, s57, v{V_KC+e}" for e in range(8)]
        w += [f"v_add_u32 v{V_VA+e}, {2*SLOT}, v{V_VC+e}" for e in range(4)]
        w += [f"v_accvgpr_write_b32 a{A_OK+r}, 0" for r in range(64)]
        w += [f"v_mov_b32 v{V_OS+r}, 0" for r in range(64)]
        k = 0
        for i, g in enumerate(dmas):
            self.emit(g)
            if i >= 3:
                n = -(-(len(w) - k) // (len(dmas) - i))
                self.emit(w[k:k + n]); k += n
        assert k == len(w)
        a(f"buffer_store_dword v{V_L0}, v{V_L0}, s[{S_SRDW}:{S_SRDW+3}], s{S_PFLAG} offen sc1")
        self.emit(self.st(1))
        a("s_waitcnt vmcnt(17)")
        for s in range(16):
            a(f"ds_read_b128 {ar(A_Q+4*s,4)}, v{V_KA+(s&7)} offset:{(s>>3)*256}")
        a("s_waitcnt vmcnt(9) lgkmcnt(0)")
        for e in range(8): a(f"v_mov_b32 v{V_KA+e}, v{V_KC+e}")
        a("s_barrier")
        self.emit(self.st(2))
        qk0 = self.ph_qk(0, 0); qk1 = self.ph_qk(1, 16)
        for f in range(self.PD): self.read(qk0["ops"][f], f)
        fixed = {}
        def add(g, it): fixed.setdefault(g, []).append(it)
        for k, g in enumerate(dma_unit("V", self.pol) + dma_unit("K", self.pol)): add((k * 25) // 16, g)
        for e in range(8):
            add(max(0, 17 + 2 * e - self.PD), f"v_add_u32 v{V_KA+e}, {SLOT}, v{V_KC+e}")
        add(35, max_stream(0, cmp=False)); add(36, self.newM(V_M))
        for k, g in enumerate(dma_unit("V", self.pol) + dma_unit("K", self.pol)): add(32 + (k * 25) // 16, g)
        return [qk0, qk1], fixed

    def final(self):
        a = self.a
        T = self.T
        W = f"s[{S_SRDW}:{S_SRDW+3}]"
        ops = []
        slot = lambda t: ((2 * t + 2) % 5) * SLOT
        for dt in range(4):
            for i in range(4):
                sl = slot(T - 4 + i)
                for ks in range(4):
                    ops.append(op_pv(ks, dt, i, areg=V_KA + 2 * dt + (sl >> 16), extra=sl & 0xffff))
        keep = dict(ops=ops, sync=[])
        n = 80
        fixed = {}
        def add(g, it): fixed.setdefault(min(g, n - 1), []).append(it)
        for dt in range(4):
            add(dt, [f"v_mov_b32 v{V_KA+2*dt}, v{V_VC+dt}", f"v_add_u32 v{V_KA+2*dt+1}, 0x10000, v{V_VC+dt}"])
        t1 = V_T + 1
        add(4, [f"v_add_f32 v{V_L0}, v{V_L0}, v{V_L1}", f"v_mov_b32 v{t1}, v{V_L0}", "v_lshlrev_b32 v46, 4, v0", "v_lshlrev_b32 v47, 3, v0"])
        add(5, [f"v_permlane32_swap_b32 v{V_L0}, v{t1}", f"s_add_u32 s56, s{S_MYBOX}, 8192", f"s_add_u32 s57, s{S_MYBOX}, 4096"])
        add(6, [f"v_add_f32 v{V_L0}, v{V_L0}, v{t1}", "v_mov_b32 v44, 1", "v_mov_b32 v45, 0"])
        add(7, f"buffer_store_dwordx2 v[{V_M}:{V_M+1}], v47, {W}, s56 offen sc1")
        send = []
        for k in range(8):
            b = V_S[0] + 4 * k
            for r in range(4): send.append(f"v_cvt_pk_bf16_f32 v{b+r}, v{V_OS+8*k+2*r}, v{V_OS+8*k+2*r+1}")
            send.append(f"buffer_store_dwordx4 {vr(b,4)}, v46, {W}, s{S_MYBOX if k < 4 else 57} offen offset:{(k%4)*1024} sc1")
        g = 19
        for k in range(0, len(send), self.send_rate):
            add(g, send[k:k + self.send_rate]); g += 1
        add(self.g_flag, self.st(6) + ["s_waitcnt vmcnt(0)"] + self.st(7) + [f"buffer_store_dword v44, v45, {W}, s{S_MYFLAG} offen sc1",
                          f"buffer_load_dword v44, v45, {W}, s{S_PFLAG} offen sc1", f"s_mov_b32 s58, {self.spin}"])
        X = V_S[1]
        poll = ["@L_poll", "s_waitcnt vmcnt(0)", "v_readfirstlane_b32 s59, v44", "s_sub_u32 s58, s58, 1", "s_cmp_eq_u32 s59, 1",
                "s_cbranch_scc1 L_got", f"buffer_load_dword v44, v45, {W}, s{S_PFLAG} offen sc1", "s_cmp_lg_u32 s58, 0",
                "s_cbranch_scc1 L_poll", "@L_got"] + self.st(8)
        poll += [f"s_add_u32 s56, s{S_PBOX}, 8192", f"s_add_u32 s57, s{S_PBOX}, 4096",
                 f"buffer_load_dwordx2 v[40:41], v47, {W}, s56 offen sc1"]
        for k in range(8):
            poll.append(f"buffer_load_dwordx4 {vr(X+4*k,4)}, v46, {W}, s{S_PBOX if k < 4 else 57} offen offset:{(k%4)*1024} sc1")
        add(self.g_poll, poll)
        for dt in range(3):
            g0 = 16 + 16 * (dt + 1) + 4
            for r in range(16): add(max(g0, 30) + r // 2, f"v_accvgpr_read_b32 v{V_OS+16*dt+r}, a{A_OK+16*dt+r}")
        self.seg([self.last_pv, keep], None, fixed, [])
        self.emit(self.st(9))
        a("v_and_b32 v46, 31, v0"); a("v_lshrrev_b32 v47, 5, v0")
        a("v_lshlrev_b32 v46, 9, v46"); a("v_lshl_add_u32 v46, v47, 4, v46")
        a(f"s_lshl_b32 s56, s{S_WAVE}, 14"); a(f"s_lshl_b32 s57, s{S_SPLIT}, 8"); a("s_add_u32 s56, s56, s57")
        a("s_waitcnt vmcnt(8)")
        t0 = V_T
        a(f"v_max_f32 v{t0}, v{V_M}, v40")
        a(f"v_sub_f32 v43, v{V_M}, v{t0}")
        a(f"v_sub_f32 v44, v40, v{t0}")
        a("v_exp_f32 v43, v43"); a("v_exp_f32 v44, v44")
        a("s_nop 0")
        a(f"v_mul_f32 v45, v43, v{V_L0}")
        a(f"v_fmac_f32 v45, v44, v41")
        a("v_rcp_f32 v45, v45")
        for r in range(16): a(f"v_accvgpr_read_b32 v{V_OS+48+r}, a{A_OK+48+r}")
        a("v_mul_f32 v43, v43, v45"); a("v_mul_f32 v44, v44, v45")
        for k in range(8):
            o = V_OS + 8 * k; b = V_S[0] + 8 * (k % 4)
            for r in range(8): a(f"v_mul_f32 v{o+r}, v{o+r}, v43")
            a(f"s_waitcnt vmcnt(7)")
            for r in range(4):
                a(f"v_lshlrev_b32 v{b+2*r}, 16, v{X+4*k+r}")
                a(f"v_and_b32 v{b+2*r+1}, 0xffff0000, v{X+4*k+r}")
            for r in range(8): a(f"v_fmac_f32 v{o+r}, v{b+r}, v44")
            for r in range(4): a(f"v_cvt_pk_bf16_f32 v{o+r}, v{o+2*r}, v{o+2*r+1}")
            a("s_nop 1")
            a(f"v_permlane32_swap_b32 v{o}, v{o+2}")
            a(f"v_permlane32_swap_b32 v{o+1}, v{o+3}")
            a(f"buffer_store_dwordx4 {vr(o,4)}, v46, s[{S_SRDO}:{S_SRDO+3}], s56 offen offset:{k*32}{self.polo}")

    def kernel(self):
        a = self.a
        T = self.T
        def pv(pb, so, vm):
            p = self.ph_pv(pb, so, vm); p["pb"] = pb; return p
        ph, fixed = self.prologue()
        self.seg(ph, pv(0, False, 24), fixed, [(softmax_stream(0, 0), 37, 63)])
        a(f"s_mov_b32 s{S_CNT}, {(T-4)//2}")
        self.emit(self.st(3))
        q0 = list(self.q); assert self.opn % 16 == 0
        a.label("L_loop")
        self.body(0, pv(0, False, 24), self.ph_qk(0, 24), pv(1, False, 24), 1, "V", "K", "V")
        self.body(1, pv(1, False, 24), self.ph_qk(1, 24), pv(0, False, 24), 0, "V", "K", "V")
        a(f"s_sub_u32 s{S_CNT}, s{S_CNT}, 1")
        a(f"s_cmp_lg_u32 s{S_CNT}, 0")
        a("s_cbranch_scc1 L_loop")
        assert [x - self.opn for x in self.q] == [x - (self.opn - 128) for x in q0] or self.stamp
        self.emit(self.st(4))
        p12 = pv(0, True, 24); p13 = pv(1, True, 16); p14 = pv(2, True, 8); p15 = pv(3, True, 0)
        self.body(0, p12, self.ph_qk(0, 24), p13, 1, "V", "skip", "V")
        self.body(1, p13, self.ph_qk(1, 16), p14, 2, "V", None, "V")
        self.body(0, p14, None, p15, 3, None, None, "V")
        self.last_pv = p15
        self.emit(self.st(5))
        self.final()
        if self.stamp:
            self.emit(self.st(10))
            a("s_waitcnt vmcnt(0)")
            self.emit(self.st(11))
            a(f"s_cmp_lg_u32 s{S_WAVE}, 0"); a("s_cbranch_scc1 L_done")
            a("s_load_dwordx2 s[40:41], s[0:1], 32")
            a("s_waitcnt lgkmcnt(0)")
            a("s_lshl_b32 s44, s2, 3"); a("s_add_u32 s44, s44, 0xfff0000")
            a("v_mov_b32 v42, 0"); a("v_mov_b32 v40, s65"); a("v_mov_b32 v41, s62")
            a(f"buffer_store_dwordx2 v[40:41], v42, s[{S_SRDW}:{S_SRDW+3}], s44 offen")
            a("s_and_b32 s45, s2, 0x7f"); a(f"s_cmp_lg_u32 s45, {self.stampwg}"); a("s_cbranch_scc1 L_done")
            a("s_mov_b32 s42, 256"); a("s_mov_b32 s43, 0x20000")
            a("s_lshr_b32 s44, s2, 7"); a("s_lshl_b32 s44, s44, 7")
            a(f"v_subrev_u32 v{V_ST}, s64, v{V_ST}"); a(f"v_subrev_u32 v{V_ST+1}, s65, v{V_ST+1}")
            a("v_lshlrev_b32 v42, 2, v0")
            a("v_cmp_gt_u32 vcc, 16, v0"); a("s_and_saveexec_b64 s[46:47], vcc")
            a(f"buffer_store_dword v{V_ST}, v42, s[40:43], s44 offen")
            a(f"buffer_store_dword v{V_ST+1}, v42, s[40:43], s44 offen offset:64")
        a.label("L_done")
        a("s_endpgm")
        self.rescale_sub()

def kd(name, nv, acc, sg=100):
    return f""".amdhsa_kernel {name}
  .amdhsa_next_free_vgpr {nv}
  .amdhsa_next_free_sgpr {sg}
  .amdhsa_accum_offset {acc}
  .amdhsa_group_segment_fixed_size 0
  .amdhsa_kernarg_size 48
  .amdhsa_user_sgpr_count 2
  .amdhsa_user_sgpr_kernarg_segment_ptr 1
  .amdhsa_system_sgpr_workgroup_id_x 1
.end_amdhsa_kernel
"""

def write(path, **kw):
    g = Gen(**kw)
    g.kernel()
    out = HEADER + f"; @launch grid=(256,1,1) block=(256,1,1) lds={RING}\n"
    out += '.amdgcn_target "amdgcn-amd-amdhsa--gfx950"\n.text\n'
    out += f".globl {KN}\n.p2align 8\n.type {KN},@function\n{KN}:\n" + g.a.text()
    out += '.section .rodata,"a"\n.p2align 6\n' + kd(KN, NV + NA, NV)
    open(path, "w").write(out)
    assert check_file(path) == 0

if __name__ == "__main__":
    write("d1.s"); write("d1_st.s", stamp=True)
```

```python
import re, sys
def regs(tok):
    tok = tok.strip().lstrip('-')
    m = re.fullmatch(r'([vas])\[(\d+):(\d+)\]', tok)
    if m: return [(m.group(1), i) for i in range(int(m.group(2)), int(m.group(3)) + 1)]
    m = re.fullmatch(r'([vas])(\d+)', tok)
    if m: return [(m.group(1), int(m.group(2)))]
    if tok == 'vcc': return [('s', 106), ('s', 107)]
    if tok == 'm0': return [('s', 124)]
    return []
TRANS = ('v_exp_f32', 'v_rcp_f32', 'v_log_f32', 'v_rsq_f32', 'v_sqrt_f32')
def parse(line):
    line = line.split(';')[0].strip()
    if not line or line.endswith(':') or line.startswith('.'): return None
    parts = line.split(None, 1)
    op = parts[0]
    ops = [x.strip() for x in parts[1].split(',')] if len(parts) > 1 else []
    ops = [o.split()[0] if o else o for o in ops]
    return op, ops, line
def rw(op, ops, line):
    R, W = [], []
    if op.startswith('v_mfma'):
        W = regs(ops[0]); R = regs(ops[1]) + regs(ops[2]) + regs(ops[3])
    elif op.startswith('buffer_load'):
        if ' lds' in line: R = regs(ops[0]) + regs(ops[1]) + regs(ops[2]) + regs('m0')
        else: W = regs(ops[0]); R = regs(ops[1]) + regs(ops[2]) + regs(ops[3])
    elif op.startswith('buffer_store') or op.startswith('buffer_atomic'):
        R = sum((regs(o) for o in ops), [])
    elif op.startswith('ds_read'):
        W = regs(ops[0]); R = regs(ops[1])
    elif op.startswith('ds_write'):
        R = sum((regs(o) for o in ops), [])
    elif op.startswith('v_permlane32_swap') or op.startswith('v_permlane16_swap'):
        R = regs(ops[0]) + regs(ops[1]); W = list(R)
    elif op.startswith('v_cmp'):
        W = regs(ops[0]); R = sum((regs(o) for o in ops[1:]), [])
    elif op in ('v_fmac_f32', 'v_dot2c_f32_bf16', 'v_writelane_b32'):
        W = regs(ops[0]); R = sum((regs(o) for o in ops), [])
    elif op.startswith('v_') or op.startswith('s_'):
        if op.startswith('s_cmp') or op.startswith('s_cbranch') or op in ('s_waitcnt', 's_nop', 's_barrier', 's_branch', 's_endpgm', 's_sleep', 's_setprio', 's_setpc_b64'):
            R = sum((regs(o) for o in ops), [])
        else:
            W = regs(ops[0]) if ops else []; R = sum((regs(o) for o in ops[1:]), [])
            if op == 'v_cndmask_b32': pass
    return R, W
def check(lines, label=""):
    t = 0
    mf_w = {}
    mf_c = {}
    valu_w = {}
    trans_w = {}
    valu_sw = {}
    salu_m0 = -99
    store_d = {}
    bad = 0
    for ln in lines:
        p = parse(ln)
        if p is None: continue
        op, ops, line = p
        R, W = rw(op, ops, line)
        ismf = op.startswith('v_mfma'); isvalu = op.startswith('v_') and not ismf
        ismem = op.startswith('buffer_') or op.startswith('ds_')
        def err(msg):
            nonlocal bad
            bad += 1; print(f"HAZARD {label}: {msg}: {line}")
        if ismf:
            passes = 8 if '32x32' in op else 4
            D = regs(ops[0]); C = regs(ops[3]); AB = regs(ops[1]) + regs(ops[2])
            for r in AB:
                if r in mf_w and t - mf_w[r][0] - 1 < (12 if mf_w[r][1] == 8 else 8): err(f"mfma D->A/B {r}")
            for r in C:
                if r in mf_w and mf_w[r][2] != tuple(C) and t - mf_w[r][0] - 1 < (10 if mf_w[r][1] == 8 else 6): err(f"mfma D->C overlap {r}")
            for r in AB + C:
                if r in valu_w and t - valu_w[r] - 1 < 2: err(f"valu->mfma {r}")
            for r in D:
                mf_w[r] = (t, passes, tuple(D))
            for r in C: mf_c[r] = (t, passes)
        else:
            if isvalu or ismem:
                for r in R + (W if (isvalu or op.startswith('ds_read') or op.startswith('buffer_load')) else []):
                    if r in mf_w and t - mf_w[r][0] - 1 < (12 if mf_w[r][1] == 8 else 8): err(f"mfma D->valu/mem {r} dist {t-mf_w[r][0]-1}")
            if isvalu:
                for r in W:
                    if r in mf_c and t - mf_c[r][0] - 1 < (7 if mf_c[r][1] == 8 else 3): err(f"mfma C WAR {r}")
                    if r in store_d and t - store_d[r] - 1 < 2: err(f"store data WAR {r}")
                if op not in TRANS:
                    for r in R:
                        if r in trans_w and t - trans_w[r] - 1 < 1: err(f"trans->valu {r}")
                if op.startswith('v_permlane'):
                    for r in R:
                        if r in valu_w and t - valu_w[r] - 1 < 2: err(f"valu->permlane {r}")
                if op.startswith('v_readfirstlane') or op.startswith('v_readlane'):
                    for r in R:
                        if r in valu_w and t - valu_w[r] - 1 < 1: err(f"valu->readlane {r}")
                for r in R:
                    if r[0] == 's' and r in valu_sw and t - valu_sw[r] - 1 < 2: err(f"valu sgpr->valu {r}")
            if op.startswith('buffer_'):
                for r in R:
                    if r[0] == 's' and r in valu_sw and t - valu_sw[r] - 1 < 5: err(f"valu sgpr->vmem {r}")
                if ' lds' in line and t - salu_m0 - 1 < 1: err("m0->lds dma")
                if op.startswith('buffer_store_dwordx4') or op.startswith('buffer_store_dwordx3'):
                    for r in regs(ops[0]): store_d[r] = t
            if isvalu:
                for r in W:
                    if r[0] in 'va': valu_w[r] = t; trans_w.pop(r, None); mf_w.pop(r, None)
                    else: valu_sw[r] = t
                if op in TRANS:
                    for r in W: trans_w[r] = t
            elif op.startswith('s_'):
                for r in W:
                    valu_sw.pop(r, None)
                    if r == ('s', 124): salu_m0 = t
        if op == 's_nop': t += int(ops[0]) + 1
        else: t += 1
    return bad
def check_file(path):
    L = open(path).read().splitlines()
    bad = check(L, "linear")
    try:
        i = L.index("L_loop:"); j = next(k for k in range(i, len(L)) if "s_cbranch_scc1 L_loop" in L[k])
        bad += check(L[i:j] + L[i:j], "loop")
    except ValueError: pass
    print(path, "hazards:", bad)
    return bad
if __name__ == "__main__":
    for p in sys.argv[1:]: check_file(p)
```
